```python
import torch

def _softmax(x, axis=-1):
    return torch.softmax(x, dim=axis)
def _gelu(x):
    return torch.nn.functional.gelu(x, approximate="tanh")
def _silu(x):
    return torch.nn.functional.silu(x)
def _sigmoid(x):
    return torch.sigmoid(x)
def _layernorm(x, axis=-1, eps=1e-5):
    m = x.mean(dim=axis, keepdim=True)
    v = x.var(dim=axis, keepdim=True, unbiased=False)
    return (x - m) / torch.sqrt(v + eps)
def _scatter_add(tgt, idx, src, axis=0):
    return tgt.clone().index_add_(axis, idx, src)
def _segment_sum(src, seg, n):
    out = torch.zeros((n,) + src.shape[1:], dtype=src.dtype)
    return out.index_add_(0, seg, src)
def _pad(x, pw):
    flat = tuple(v for pair in reversed(pw) for v in pair)
    return torch.nn.functional.pad(x, flat)

kernel_name = 'interleave_layers__ssm_conv_h3__dense_activation_squared_relu__prompt'

def setup_inputs():

    _w = (lambda a: (lambda t: t.to(torch.bfloat16) if t.is_floating_point() else t)(torch.as_tensor(a)))
    def _A_setup():
        B, S, D = 1, 2048, 512
        ks = 4
        return {
            "q": _w((lambda *s: torch.randn(*s, dtype=torch.bfloat16) * 0.05)(B, S, D)),
            "k": _w((lambda *s: torch.randn(*s, dtype=torch.bfloat16) * 0.8)(B, S, D)),
            "v": _w((lambda *s: torch.randn(*s, dtype=torch.bfloat16) * 0.8)(B, S, D)),
            "shift_k": _w((lambda *s: torch.randn(*s, dtype=torch.bfloat16) * 0.8)(D, ks) * 0.5),
            "ssm_k": _w((lambda *s: torch.randn(*s, dtype=torch.bfloat16) * 0.8)(D, S) * (1.0 / S ** 0.5)),
            "ssm_D": _w((lambda *s: torch.randn(*s, dtype=torch.bfloat16) * 0.8)(D)),
        }
    _A_in = _A_setup()

    def _B_setup():
        B, S, D, F = 1, 2048, 512, 1792
        return {
            "x": _w((lambda *s: torch.randn(*s, dtype=torch.bfloat16) * 0.05)(B, S, D)),
            "w1": _w((lambda *s: torch.randn(*s, dtype=torch.bfloat16) * 0.05)(D, F)),
            "b1": _w((lambda *s: torch.randn(*s, dtype=torch.bfloat16) * 0.4)(F)),
            "w2": _w((lambda *s: torch.randn(*s, dtype=torch.bfloat16) * 0.05)(F, D)),
            "b2": _w((lambda *s: torch.randn(*s, dtype=torch.bfloat16) * 1.6)(D)),
        }
    _B_in = _B_setup()

    return {
        "A_q": _A_in["q"],
        "A_k": _A_in["k"],
        "A_v": _A_in["v"],
        "A_shift_k": _A_in["shift_k"],
        "A_ssm_k": _A_in["ssm_k"],
        "A_ssm_D": _A_in["ssm_D"],
        "B_x": _B_in["x"],
        "B_w1": _B_in["w1"],
        "B_b1": _B_in["b1"],
        "B_w2": _B_in["w2"],
        "B_b2": _B_in["b2"],
    }

def reference(A_q, A_k, A_v, A_shift_k, A_ssm_k, A_ssm_D, B_x, B_w1, B_b1, B_w2, B_b2):
    def _A_ref(q, k, v, shift_k, ssm_k, ssm_D):
        B, S, D = q.shape
        ks = shift_k.shape[-1]
        k_pad = _pad(k, ((0, 0), (ks - 1, 0), (0, 0)))
        k_shift = torch.zeros_like(k)
        for t in range(ks):
            k_shift = k_shift + k_pad[:, t:t + S, :] * shift_k[:, ks - 1 - t][None, None, :]
        kv = k_shift * v
        L = 2 * S
        kv_pad = _pad(kv, ((0, 0), (0, S), (0, 0)))
        kf_pad = _pad(ssm_k, ((0, 0), (0, S)))
        kv_f = (lambda x, axes=(-2,-1): torch.fft.rfft2(x.float(), dim=axes))(kv_pad[:, None, :, :], axes=(1, 2))
        kf_f = (lambda x, axes=(-2,-1): torch.fft.rfft2(x.float(), dim=axes))(kf_pad[:, None, :], axes=(1, 2))
        kf_f = (lambda x, *d: x.permute(*d))(kf_f, 1, 2, 0)
        y_f = kv_f * kf_f[None, :, :, :]
        y = (lambda x, s, axes=(-2,-1): torch.fft.irfft2(x, s=s, dim=axes).to(torch.bfloat16))(y_f, (1, L), axes=(1, 2))[:, 0, :S, :]
        y = y + kv * ssm_D[None, None, :]
        return q * y

    def _B_ref(x, w1, b1, w2, b2):
        h = torch.einsum("bsd,df->bsf", x, w1) + b1
        zero = torch.zeros_like(h)
        r = torch.where(h > zero, h, zero)
        h = r * r
        out = torch.einsum("bsf,fd->bsd", h, w2) + b2
        return out

    x = A_q
    x = x + _A_ref(_layernorm(x, axis=-1), A_k, A_v, A_shift_k, A_ssm_k, A_ssm_D)
    x = x + _B_ref(_layernorm(x, axis=-1), B_w1, B_b1, B_w2, B_b2)
    x = x + _A_ref(_layernorm(x, axis=-1), A_k, A_v, A_shift_k, A_ssm_k, A_ssm_D)
    x = x + _B_ref(_layernorm(x, axis=-1), B_w1, B_b1, B_w2, B_b2)
    return x
```

```python
import re

REG_RE = re.compile(r'^(-?\|?)([vas])(?:(\d+)|\[(\d+):(\d+)\])\|?$')


def regs_of(tok):
    t = tok.strip()
    t = re.sub(r'^(neg|abs)\((.*)\)$', r'\2', t)
    if t in ('vcc',):
        return {('s', 'vcc')}
    if t in ('vcc_lo', 'vcc_hi'):
        return {('s', 'vcc')}
    if t in ('exec', 'exec_lo', 'exec_hi'):
        return {('s', 'exec')}
    if t == 'm0':
        return {('s', 'm0')}
    m = REG_RE.match(t)
    if not m:
        return set()
    f = m.group(2)
    if m.group(3) is not None:
        return {(f, int(m.group(3)))}
    return {(f, i) for i in range(int(m.group(4)), int(m.group(5)) + 1)}


def split_ops(s):
    out, cur, depth = [], '', 0
    for ch in s:
        if ch in '[(':
            depth += 1
        elif ch in '])':
            depth -= 1
        if ch == ',' and depth == 0:
            out.append(cur.strip())
            cur = ''
        else:
            cur += ch
    if cur.strip():
        out.append(cur.strip())
    return out


TRANS = ('v_exp_f32', 'v_log_f32', 'v_rcp_f32', 'v_rsq_f32', 'v_sqrt_f32', 'v_sin_f32', 'v_cos_f32')
S_NODST = ('s_cmp', 's_cbranch', 's_waitcnt', 's_barrier', 's_nop', 's_setprio', 's_sleep', 's_endpgm',
           's_branch', 's_bitcmp', 's_setreg')


class Ins:
    __slots__ = ('text', 'op', 'rd', 'wr', 'kind', 'srcc', 'ab', 'passes', 'dpp', 'wide_store', 'mods', 'ops', 'cmt')

    def __init__(self, text):
        self.text = text.strip()
        body = self.text
        sp = body.split(None, 1)
        self.op = op = sp[0]
        rest = sp[1] if len(sp) > 1 else ''
        ops = split_ops(rest)
        mods = ''
        clean = []
        for o in ops:
            parts = o.split(None, 1)
            clean.append(parts[0])
            if len(parts) > 1:
                mods += ' ' + parts[1]
        self.ops = clean
        self.mods = mods
        self.rd, self.wr = set(), set()
        self.srcc, self.ab = set(), set()
        self.passes = 0
        self.dpp = False
        self.wide_store = set()
        R = [regs_of(o) for o in clean]
        allr = lambda L: set().union(*L) if L else set()
        if op.startswith('v_mfma'):
            self.kind = 'mfma'
            self.wr = R[0]
            self.ab = R[1] | R[2]
            self.srcc = R[3]
            self.rd = self.ab | self.srcc
            self.passes = 8 if '32x32x16' in op else 4
        elif op.startswith('ds_'):
            self.kind = 'ds'
            if op.startswith('ds_read') or op.startswith('ds_bpermute') or op.startswith('ds_swizzle') or op.startswith('ds_permute'):
                self.wr = R[0]
                self.rd = allr(R[1:])
            else:
                self.rd = allr(R)
        elif op.startswith('buffer_') or op.startswith('global_'):
            self.kind = 'vmem'
            if op in ('buffer_wbl2', 'buffer_inv'):
                pass
            elif 'load' in op and (' lds' in (mods + ' ') or '_lds_' in op):
                self.rd = allr(R) | {('s', 'm0')}
            elif 'load' in op:
                self.wr = R[0]
                self.rd = allr(R[1:])
            elif 'atomic' in op:
                self.rd = allr(R)
                if 'sc0' in mods:
                    self.wr = R[0]
            else:
                self.rd = allr(R)
                if op.endswith('x4') or op.endswith('x3'):
                    self.wide_store = R[0] if op.startswith('buffer_') else R[1]
        elif op.startswith('s_load') or op.startswith('s_memtime') or op.startswith('s_memrealtime') or op.startswith('s_buffer_load'):
            self.kind = 'smem'
            self.wr = R[0]
            self.rd = allr(R[1:])
        elif op.startswith('s_'):
            self.kind = 'salu'
            if op.startswith(S_NODST):
                self.rd = allr(R)
            else:
                self.wr = R[0]
                self.rd = allr(R[1:])
                if 'saveexec' in op:
                    self.wr = self.wr | {('s', 'exec')}
                    self.rd = self.rd | {('s', 'exec')}
                if op.startswith(('s_addk', 's_mulk', 's_bitset')):
                    self.rd = self.rd | R[0]
        elif op.startswith('v_'):
            self.kind = 'valu'
            if op == 'v_nop':
                pass
            elif 'permlane' in op and 'swap' in op:
                self.wr = R[0] | R[1]
                self.rd = R[0] | R[1]
            else:
                self.wr = R[0]
                self.rd = allr(R[1:])
                if op.startswith(('v_fmac', 'v_dot2c', 'v_pk_fmac', 'v_writelane')):
                    self.rd = self.rd | R[0]
                if '_dpp' in op or 'row_' in mods or 'quad_perm' in mods:
                    self.dpp = True
                    self.rd = self.rd | R[0]
                if 'UNUSED_PRESERVE' in mods:
                    self.rd = self.rd | R[0]
                if op.startswith('v_cndmask') and len(clean) == 3:
                    self.rd = self.rd | {('s', 'vcc')}
                if op.startswith(('v_add_co', 'v_sub_co', 'v_addc', 'v_subb', 'v_mad_u64')):
                    self.wr = R[0] | R[1]
                    self.rd = allr(R[2:])
        else:
            raise ValueError('unknown instruction: ' + text)


def isv(r):
    return r[0] in 'va'


class Stream:
    def __init__(self):
        self.lines = []
        self.hist = []
        self.slot = 0
        self.vm = []
        self.lg = []
        self.ntok = 0
        self.count = {}

    def snapshot(self):
        return (list(self.hist), self.slot, [list(x) for x in self.vm], [list(x) for x in self.lg])

    def restore(self, st):
        self.hist, self.slot = list(st[0]), st[1]
        self.vm = [list(x) for x in st[2]]
        self.lg = [list(x) for x in st[3]]

    def raw(self, text):
        self.lines.append(text)

    def comment(self, text):
        self.lines.append('    ; ' + text)

    def _put(self, ins, states=1):
        self.lines.append('    ' + ins.text)
        self.hist.append((ins, self.slot))
        self.slot += states
        if len(self.hist) > 40:
            self.hist = self.hist[-30:]
        self.count[ins.kind] = self.count.get(ins.kind, 0) + 1

    def nop(self, n):
        while n > 0:
            k = min(n, 16)
            self._put(Ins(f's_nop {k-1}'), k)
            n -= k

    def _emit_wait(self, vm=None, lg=None):
        parts = []
        if vm is not None:
            vm = min(vm, 63)
            if vm < len(self.vm):
                parts.append(f'vmcnt({vm})')
                self.vm = self.vm[len(self.vm) - vm:] if vm else []
        if lg is not None:
            lg = min(lg, 15)
            if lg < len(self.lg):
                parts.append(f'lgkmcnt({lg})')
                self.lg = self.lg[len(self.lg) - lg:] if lg else []
        if parts:
            self._put(Ins('s_waitcnt ' + ' '.join(parts)))

    def wait_vm(self, tok=None):
        if tok is None:
            return self._emit_wait(vm=0)
        for i, e in enumerate(self.vm):
            if e[0] == tok:
                return self._emit_wait(vm=len(self.vm) - 1 - i)

    def wait_lg(self, tok=None):
        if tok is None:
            return self._emit_wait(lg=0)
        for i, e in enumerate(self.lg):
            if e[0] == tok:
                if any(x[2] for x in self.lg):
                    return self._emit_wait(lg=0)
                return self._emit_wait(lg=len(self.lg) - 1 - i)

    def force_wait(self, vm=None, lg=None):
        parts = []
        if vm is not None:
            parts.append(f'vmcnt({vm})')
            self.vm = self.vm[len(self.vm) - vm:] if vm and vm < len(self.vm) else ([] if not vm else self.vm)
        if lg is not None:
            parts.append(f'lgkmcnt({lg})')
            self.lg = self.lg[len(self.lg) - lg:] if lg and lg < len(self.lg) else ([] if not lg else self.lg)
        self._put(Ins('s_waitcnt ' + ' '.join(parts)))

    def _auto_wait(self, ins):
        touched = ins.rd | ins.wr
        vm = lg = None
        for i, e in enumerate(self.vm):
            if e[1] & touched:
                if ins.kind == 'vmem' and not (e[1] & ins.rd):
                    continue
                vm = len(self.vm) - 1 - i
        for i, e in enumerate(self.lg):
            if e[1] & touched:
                if ins.kind == 'ds' and not e[2] and not (e[1] & ins.rd):
                    continue
                lg = len(self.lg) - 1 - i
        if lg is not None and any(x[2] for x in self.lg):
            lg = 0
        self._emit_wait(vm, lg)

    def _need(self, ins):
        need = 0
        for p, sl in self.hist:
            dist = self.slot - sl - 1
            if p.op.startswith('s_nop'):
                continue
            req = 0
            if p.kind == 'valu':
                pv = {r for r in p.wr if isv(r)}
                ps = {r for r in p.wr if r[0] == 's'}
                if ins.kind == 'mfma' and pv & ins.rd:
                    req = max(req, 2)
                if ins.kind == 'valu':
                    if ins.dpp and pv & ins.rd:
                        req = max(req, 2)
                    if 'permlane' in ins.op and pv & ins.rd:
                        req = max(req, 2)
                    if ins.op.startswith(('v_readlane', 'v_readfirstlane')) and pv & ins.rd:
                        req = max(req, 1)
                    if p.op.startswith(TRANS) and pv & ins.rd:
                        req = max(req, 1)
                    if ('dst_sel:WORD' in p.mods or 'dst_sel:BYTE' in p.mods) and pv & (ins.rd | ins.wr):
                        req = max(req, 1)
                    if ps & ins.rd:
                        req = max(req, 4 if ins.op.startswith(('v_readlane', 'v_writelane')) else 2)
                if ins.kind == 'vmem' and ps & ins.rd:
                    req = max(req, 5)
                if ins.kind in ('salu', 'smem') and ps & ins.rd:
                    req = max(req, 1)
                if ins.op.startswith('s_cbranch_vcc') and ('s', 'vcc') in ps:
                    req = max(req, 1)
            elif p.kind == 'mfma':
                big = p.passes == 8
                if ins.kind == 'mfma':
                    if p.wr & ins.ab:
                        req = max(req, 12 if big else 8)
                    if p.wr & ins.srcc and not (p.wr == ins.srcc and p.passes == ins.passes):
                        req = max(req, 10 if big else 6)
                    if p.wr & ins.wr and not (p.wr == ins.srcc):
                        if p.passes != ins.passes:
                            req = max(req, 12)
                else:
                    if p.wr & (ins.rd | ins.wr):
                        req = max(req, 12 if big else 8)
                    if ins.kind in ('valu',) and p.srcc & ins.wr:
                        req = max(req, 7 if big else 3)
            elif p.kind == 'salu':
                if ('s', 'm0') in p.wr and ('s', 'm0') in ins.rd and ins.kind in ('vmem', 'ds'):
                    req = max(req, 1)
            elif p.kind == 'vmem':
                if p.wide_store & ins.wr:
                    req = max(req, 2)
            if req > dist:
                need = max(need, req - dist)
        return need

    def settle(self):
        need = 0
        for p, sl in self.hist:
            dist = self.slot - sl - 1
            req = 0
            if p.kind == 'mfma':
                req = 12 if p.passes == 8 else 8
            elif p.kind == 'valu':
                req = 5 if any(r[0] == 's' for r in p.wr) else 2
            elif p.kind == 'vmem' and p.wide_store:
                req = 2
            elif p.kind == 'salu' and ('s', 'm0') in p.wr:
                req = 1
            need = max(need, req - dist)
        if need > 0:
            self.nop(need)

    def __call__(self, text):
        ins = Ins(text)
        self._auto_wait(ins)
        n = self._need(ins)
        if n:
            self.nop(n)
        if ins.op == 's_nop':
            self._put(ins, int(ins.ops[0], 0) + 1)
        else:
            self._put(ins)
        tok = None
        if ins.kind == 'vmem':
            self.ntok += 1
            tok = self.ntok
            self.vm.append([tok, set(ins.wr)])
        elif ins.kind == 'ds':
            self.ntok += 1
            tok = self.ntok
            self.lg.append([tok, set(ins.wr), False])
        elif ins.kind == 'smem':
            self.ntok += 1
            tok = self.ntok
            self.lg.append([tok, set(ins.wr), True])
        return tok

    def label(self, name, settle=True):
        if settle:
            self.settle()
        self.lines.append(name + ':')

    def branch(self, text, settle=True):
        if settle:
            self.settle()
        return self(text)

    def barrier(self):
        self.wait_lg()
        self('s_barrier')

    def text(self):
        return '\n'.join(self.lines) + '\n'


def v(a, n=1):
    return f'v{a}' if n == 1 else f'v[{a}:{a+n-1}]'


def a(x, n=1):
    return f'a{x}' if n == 1 else f'a[{x}:{x+n-1}]'


def s(x, n=1):
    return f's{x}' if n == 1 else f's[{x}:{x+n-1}]'
```

```python
import sys
sys.path.insert(0, 'dev')
from asmlib import Stream, v, a, s

NAME = 'interleave_layers__ssm_conv_h3__dense_activation_squared_relu__prompt'

WS_F1 = 0x1000
WS_F2 = 0x2000
WS_STAMP = 0x4000
WS_FP = 0x10000
WS_FX = 0x18000
WS_ST = 0x40000
WS_U = 0x100000
WS_Y = 0x300000
WS_XN = 0x500000
WS_PT = 0x900000
WS_SIZE = 0x1900000

L_XB = 0
L_HC = 0
L_UR = 16640
L_STG = 32768
L_HB = 32768
L_YS = 39936
L_RS = 48128
L_MISC = 64512
L_WL = 65536
L_MODE = 32000
LDS_BYTES = 163840

S_WAVE, S_X, S_I, S_G, S_R, S_E, S_MODE, S_SPIN = 3, 4, 5, 6, 7, 8, 9, 10
R_WS, R_K, R_V, R_H, R_W1, R_W2, R_Q, R_OUT, R_DBG, R_SK, R_B1, R_B2 = 12, 16, 20, 24, 28, 32, 36, 40, 44, 48, 52, 56
S_DDP = 60
S_MASK = 62
S_D = 63
S_T = 64
S_P = 80
S_L = 81
S_TS = 96
S_T0 = 98

SPIN_MAX = 100000


def srd(r):
    return s(r, 4)


class Gen:
    def __init__(self, force_slow=False, stop=None, stamps=False):
        self.e = Stream()
        self.force_slow = force_slow
        self.stop = stop
        self.stamps = stamps
        self.nlab = 0

    def lab(self, base):
        self.nlab += 1
        return f'L_{base}_{self.nlab}'

    def stamp(self, idx):
        if not self.stamps:
            return
        e = self.e
        e(f's_memrealtime {s(S_TS,2)}')
        e.wait_lg()
        e(f'v_mov_b32 v9, {s(S_TS)}')
        e(f'buffer_store_dword v9, v2, {srd(R_WS)}, {s(S_T0)} offen offset:{idx*4}')

    def poll(self, voff, soff, imm=0, nreg=1, tmp=9):
        e = self.e
        L = self.lab('poll')
        Ld = self.lab('polld')
        e(f's_mov_b32 {s(S_SPIN)}, {SPIN_MAX}')
        e.label(L)
        if nreg == 1:
            e(f'buffer_load_dword {v(tmp)}, {v(voff)}, {srd(R_WS)}, {soff} offen offset:{imm} sc1')
            e.force_wait(vm=0)
            e(f'v_cmp_ne_u32 vcc, {s(S_E)}, {v(tmp)}')
        else:
            assert nreg == 8
            e(f'buffer_load_dwordx4 {v(tmp,4)}, {v(voff)}, {srd(R_WS)}, {soff} offen offset:{imm} sc1')
            e(f'buffer_load_dwordx4 {v(tmp+4,4)}, {v(voff)}, {srd(R_WS)}, {soff} offen offset:{imm+1024} sc1')
            e.force_wait(vm=0)
            for j in range(8):
                e(f'v_xor_b32 {v(tmp+j)}, {s(S_E)}, {v(tmp+j)}')
            e(f'v_or3_b32 {v(tmp)}, {v(tmp)}, {v(tmp+1)}, {v(tmp+2)}')
            e(f'v_or3_b32 {v(tmp+3)}, {v(tmp+3)}, {v(tmp+4)}, {v(tmp+5)}')
            e(f'v_or3_b32 {v(tmp)}, {v(tmp)}, {v(tmp+6)}, {v(tmp+7)}')
            e(f'v_or_b32 {v(tmp)}, {v(tmp)}, {v(tmp+3)}')
            e(f'v_cmp_ne_u32 vcc, 0, {v(tmp)}')
        e.branch(f's_cbranch_vccz {Ld}')
        e(f's_sub_u32 {s(S_SPIN)}, {s(S_SPIN)}, 1')
        e(f's_cmp_lg_u32 {s(S_SPIN)}, 0')
        e.branch(f's_cbranch_scc1 {L}')
        e.label(Ld)

    def publish(self, soff, imm=0, always_dev=False):
        e = self.e
        e.force_wait(vm=0)
        if always_dev:
            e(f'buffer_store_dword v1, v2, {srd(R_WS)}, {soff} offen offset:{imm} sc1')
            return
        Ls = self.lab('pubs')
        Ld = self.lab('pubd')
        e(f's_cmp_lg_u32 {s(S_MODE)}, 0')
        e.branch(f's_cbranch_scc1 {Ls}')
        e(f'buffer_store_dword v1, v2, {srd(R_WS)}, {soff} offen offset:{imm}')
        e.branch(f's_branch {Ld}')
        e.label(Ls)
        e('buffer_wbl2 sc1')
        e.force_wait(vm=0)
        e(f'buffer_store_dword v1, v2, {srd(R_WS)}, {soff} offen offset:{imm} sc1')
        e.label(Ld)

    def prologue(self):
        e = self.e
        e('s_cmp_ge_u32 s2, 256')
        e.branch('s_cbranch_scc1 L_end')
        ptr = {R_Q: 0, R_K: 8, R_V: 16, R_SK: 24, R_H: 32, R_W1: 56, R_B1: 64, R_W2: 72, R_B2: 80, R_OUT: 88,
               R_DBG: 96, R_WS: 104}
        size = {R_Q: 2097152, R_K: 2097152, R_V: 2097152, R_SK: 4096, R_H: 2097152, R_W1: 1835008, R_B1: 3584,
                R_W2: 1835008, R_B2: 1024, R_OUT: 2097152, R_DBG: 256, R_WS: WS_SIZE}
        for r in (R_K, R_V, R_WS, R_SK, R_H, R_DBG):
            e(f's_load_dwordx2 {s(r,2)}, s[0:1], {ptr[r]}')
        for r in ptr:
            e(f's_mov_b32 {s(r+2)}, {size[r]}')
            e(f's_mov_b32 {s(r+3)}, 0x20000')
        e('v_lshrrev_b32 v1, 6, v0')
        e('v_and_b32 v0, 63, v0')
        e(f'v_readfirstlane_b32 {s(S_WAVE)}, v1')
        e(f's_and_b32 {s(S_X)}, s2, 7')
        e(f's_lshr_b32 {s(S_I)}, s2, 3')
        e(f's_and_b32 {s(S_R)}, {s(S_I)}, 7')
        e(f's_lshr_b32 {s(S_G)}, {s(S_I)}, 3')
        e(f's_lshl2_add_u32 {s(S_G)}, {s(S_X)}, {s(S_G)}')
        e(f's_mov_b32 {s(S_MASK)}, 0xffff0000')
        e('v_cmp_ne_u32 vcc, 0, v0')
        e('v_mov_b32 v2, 0x7ff00000')
        e('v_cndmask_b32 v2, 0, v2, vcc')
        e.wait_lg()
        for r in (R_Q, R_W1, R_B1, R_W2, R_B2, R_OUT):
            e(f's_load_dwordx2 {s(r,2)}, s[0:1], {ptr[r]}')
        e(f's_load_dwordx2 {s(S_DDP,2)}, s[0:1], 40')
        e(f's_load_dword {s(S_E)}, {s(R_WS,2)}, 0')
        if self.stamps:
            e(f's_lshl2_add_u32 {s(S_T0)}, s2, {s(S_WAVE)}')
            e(f's_lshl_b32 {s(S_T0)}, {s(S_T0)}, 6')
            e(f's_add_u32 {s(S_T0)}, {s(S_T0)}, {WS_ST}')

    def epoch_ready(self):
        e = self.e
        e(f's_mul_i32 {s(S_E)}, {s(S_E)}, 0x9E3779B1')
        e(f's_add_u32 {s(S_E)}, {s(S_E)}, 0x7F4A7C15')
        e(f'v_mov_b32 v1, {s(S_E)}')

    def phase0_A(self):
        e = self.e
        KR, VR, SKR, W, KF, VF, AC, PK = 10, 32, 48, 56, 72, 116, 148, 180
        e('v_and_b32 v3, 7, v0')
        e('v_lshrrev_b32 v4, 3, v0')
        e(f's_lshl_b32 {s(S_T)}, {s(S_WAVE)}, 3')
        e(f's_lshl4_add_u32 {s(S_T)}, {s(S_X)}, {s(S_T)}')
        e(f'v_add_u32 v4, {s(S_T)}, v4')
        e(f's_lshl_b32 {s(S_T+1)}, {s(S_I)}, 6')
        e(f'v_lshl_add_u32 v3, v3, 3, {s(S_T+1)}')
        e('v_lshlrev_b32 v5, 10, v3')
        e('v_lshl_add_u32 v5, v4, 3, v5')
        e('v_subrev_u32 v6, 3072, v5')
        e('v_min_u32 v6, 0x7ff00000, v6')
        e(f's_movk_i32 {s(S_T+2)}, 4096')
        for j in range(3):
            e(f'buffer_load_dwordx2 {v(KR+2*j,2)}, v6, {srd(R_K)}, 0 offen offset:{1024*j}')
        for j in range(8):
            so = '0' if j < 4 else s(S_T+2)
            e(f'buffer_load_dwordx2 {v(KR+6+2*j,2)}, v5, {srd(R_K)}, {so} offen offset:{1024*(j%4)}')
            if j == 0:
                e('v_lshlrev_b32 v7, 5, v4')
                e(f'buffer_load_dwordx4 {v(SKR,4)}, v7, {srd(R_SK)}, 0 offen')
                e(f'buffer_load_dwordx4 {v(SKR+4,4)}, v7, {srd(R_SK)}, 0 offen offset:16')
            e(f'buffer_load_dwordx2 {v(VR+2*j,2)}, v5, {srd(R_V)}, {so} offen offset:{1024*(j%4)}')
        e('v_lshlrev_b32 v8, 14, v4')
        e('v_sub_u32 v3, 2040, v3')
        e('v_lshl_add_u32 v8, v3, 1, v8')
        e.wait_lg()
        self.epoch_ready()
        self.stamp(0)

        def unpack(dst_lo, dst_hi, src):
            e(f'v_lshlrev_b32 {v(dst_lo)}, 16, {v(src)}')
            e(f'v_and_b32 {v(dst_hi)}, {s(S_MASK)}, {v(src)}')

        def unpack_k(rho):
            unpack(KF+4*rho, KF+4*rho+1, KR+2*rho)
            unpack(KF+4*rho+2, KF+4*rho+3, KR+2*rho+1)
        for rho in range(4):
            unpack_k(rho)
        for cc in range(4):
            unpack(W+0+cc, W+4+cc, SKR+2*cc)
            unpack(W+8+cc, W+12+cc, SKR+2*cc+1)
        for j in range(8):
            if j > 0:
                unpack_k(j+3)
            unpack(VF+4*j, VF+4*j+1, VR+2*j)
            unpack(VF+4*j+2, VF+4*j+3, VR+2*j+1)
            for pr in range(2):
                d = v(AC+4*j+2*pr, 2)
                e(f'v_pk_mul_f32 {d}, {v(KF+4*j+2*pr,2)}, {v(W+12+2*pr,2)}')
            for t in (2, 1, 0):
                for pr in range(2):
                    d = v(AC+4*j+2*pr, 2)
                    e(f'v_pk_fma_f32 {d}, {v(KF+4*(j+3-t)+2*pr,2)}, {v(W+4*t+2*pr,2)}, {d}')
            for pr in range(2):
                d = v(AC+4*j+2*pr, 2)
                e(f'v_pk_mul_f32 {d}, {d}, {v(VF+4*j+2*pr,2)}')
        e(f's_mov_b32 {s(S_T+3)}, {WS_U}')
        for cc in range(4):
            for jj in range(4):
                e(f'v_cvt_pk_bf16_f32 {v(PK+4*cc+jj)}, {v(AC+4*(7-2*jj)+cc)}, {v(AC+4*(6-2*jj)+cc)}')
            e(f'buffer_store_dwordx4 {v(PK+4*cc,4)}, v8, {srd(R_WS)}, {s(S_T+3)} offen')
            if cc < 3:
                e(f's_add_u32 {s(S_T+3)}, {s(S_T+3)}, 4096')
        L = self.lab('cen')
        Ld = self.lab('cend')
        e(f's_getreg_b32 {s(S_T)}, hwreg(HW_REG_XCC_ID, 0, 4)')
        e(f's_or_b32 {s(S_T)}, {s(S_T)}, 0x80')
        e(f's_mul_i32 {s(S_T)}, {s(S_T)}, 0x01010101')
        e(f's_mov_b32 {s(S_T+1)}, 0x80808080')
        e(f's_lshl_b32 {s(S_T+2)}, {s(S_X)}, 5')
        e('v_and_b32 v3, 7, v0')
        e('v_lshlrev_b32 v3, 2, v3')
        e(f's_mov_b32 {s(S_SPIN)}, {SPIN_MAX}')
        e.label(L)
        e(f'buffer_load_dword v4, v3, {srd(R_DBG)}, {s(S_T+2)} offen sc1')
        e.force_wait(vm=0)
        e(f'v_and_b32 v5, {s(S_T+1)}, v4')
        e(f'v_cmp_ne_u32 vcc, {s(S_T+1)}, v5')
        e.branch(f's_cbranch_vccz {Ld}')
        e(f's_sub_u32 {s(S_SPIN)}, {s(S_SPIN)}, 1')
        e(f's_cmp_lg_u32 {s(S_SPIN)}, 0')
        e.branch(f's_cbranch_scc1 {L}')
        e.label(Ld)
        e(f'v_cmp_ne_u32 vcc, {s(S_T)}, v4')
        e('s_nop 1')
        e('s_cmp_lg_u64 vcc, 0')
        e(f's_cselect_b32 {s(S_MODE)}, 1, 0')
        if self.force_slow:
            e(f's_mov_b32 {s(S_MODE)}, 1')
        e(f'v_mov_b32 v3, {L_MODE}')
        e(f'v_mov_b32 v4, {s(S_MODE)}')
        e('ds_write_b32 v3, v4')
        e(f's_lshl_b32 {s(S_T)}, {s(S_X)}, 8')
        e(f's_lshl3_add_u32 {s(S_T)}, {s(S_I)}, {s(S_T)}')
        e(f's_lshl2_add_u32 {s(S_T)}, {s(S_WAVE)}, {s(S_T)}')
        e(f's_add_u32 {s(S_T)}, {s(S_T)}, {WS_F1}')
        self.publish(s(S_T))
        self.stamp(1)

    def dma_setup(self, base, rowbytes):
        e = self.e
        e('v_lshrrev_b32 v10, 3, v0')
        e('v_bfe_u32 v11, v0, 1, 2')
        e('v_bfe_u32 v12, v0, 4, 2')
        e('v_xor_b32 v11, v11, v12')
        e('v_and_b32 v12, 1, v0')
        e('v_lshlrev_b32 v12, 4, v12')
        e('v_lshl_add_u32 v11, v11, 5, v12')
        e(f's_movk_i32 {s(S_T)}, {rowbytes}')
        e(f'v_mad_u32_u24 {v(base)}, v10, {s(S_T)}, v11')
        for j in range(1, 4):
            e(f'v_add_u32 {v(base+j)}, {8*j*rowbytes - 1024*j}, {v(base)}')

    def dma_panels(self, rsrc, vo, s_goff, s_lds, npanel, nit, rowbytes, pan_gstep, pan_lstep):
        e = self.e
        Lp = self.lab('dmap')
        Li = self.lab('dmai')
        c1, c2, g, l = S_L, S_L+1, S_L+2, S_L+3
        assert not any(x[1] for x in e.vm), 'register loads pending before a DMA loop'
        e(f's_mov_b32 {s(c1)}, {npanel}')
        e.label(Lp)
        e(f's_mov_b32 {s(c2)}, {nit}')
        e(f's_mov_b32 {s(g)}, {s(s_goff)}')
        e(f's_mov_b32 {s(l)}, {s(s_lds)}')
        e.label(Li)
        e(f's_mov_b32 m0, {s(l)}')
        e(f's_add_u32 {s(l)}, {s(l)}, 4096')
        for j in range(4):
            e(f'buffer_load_dwordx4 {v(vo+j)}, {srd(rsrc)}, {s(g)} offen offset:{1024*j} lds')
        e(f's_add_u32 {s(g)}, {s(g)}, {32*rowbytes}')
        e(f's_sub_u32 {s(c2)}, {s(c2)}, 1')
        e(f's_cmp_lg_u32 {s(c2)}, 0')
        e.branch(f's_cbranch_scc1 {Li}')
        if isinstance(pan_gstep, int):
            e(f's_add_u32 {s(s_goff)}, {s(s_goff)}, {pan_gstep}')
        else:
            e(f's_add_u32 {s(s_goff)}, {s(s_goff)}, {pan_gstep}')
        e(f's_add_u32 {s(s_lds)}, {s(s_lds)}, {pan_lstep}')
        e(f's_sub_u32 {s(c1)}, {s(c1)}, 1')
        e(f's_cmp_lg_u32 {s(c1)}, 0')
        e.branch(f's_cbranch_scc1 {Lp}')
        for _ in range(70):
            e.ntok += 1
            e.vm.append([e.ntok, set()])

    VO1, VO2 = 120, 124

    def issue_w1(self, half):
        e = self.e
        g, l = S_T+4, S_T+5
        e(f's_mul_i32 {s(g)}, {s(S_R)}, 448')
        e(f's_sub_u32 {s(S_T+6)}, {s(S_WAVE)}, 2')
        e(f's_lshl_b32 {s(S_T+7)}, {s(S_T+6)}, 8')
        e(f's_add_u32 {s(g)}, {s(g)}, {s(S_T+7)}')
        if half:
            e(f's_add_u32 {s(g)}, {s(g)}, {256*3584}')
        e(f's_lshl_b32 {s(l)}, {s(S_T+6)}, 16')
        e(f's_add_u32 {s(l)}, {s(l)}, {L_STG}')
        e(f's_lshl_b32 {s(S_T+7)}, {s(S_T+6)}, 5')
        e(f's_sub_u32 {s(S_T+7)}, 128, {s(S_T+7)}')
        self.dma_panels(R_W1, self.VO1, g, l, 2, 8, 3584, s(S_T+7), 32768)

    def issue_w2(self, part, lw_sgpr):
        e = self.e
        g, l = S_T+4, S_T+5
        psz = 12288 if part else 16384
        e(f's_mul_i32 {s(g)}, {s(S_R)}, {224*1024}')
        e(f's_lshl_b32 {s(S_T+7)}, {s(lw_sgpr)}, 9')
        e(f's_add_u32 {s(g)}, {s(g)}, {s(S_T+7)}')
        if part:
            e(f's_add_u32 {s(g)}, {s(g)}, {128*1024}')
        e(f's_mul_i32 {s(l)}, {s(lw_sgpr)}, {4*psz}')
        e(f's_add_u32 {s(l)}, {s(l)}, {L_WL if part else L_STG}')
        self.dma_panels(R_W2, self.VO2, g, l, 4, 3 if part else 4, 1024, 128, psz)

    TRP = 112

    def tr_patterns(self):
        e = self.e
        e('v_lshrrev_b32 v10, 2, v0')
        e('v_bfe_u32 v11, v0, 3, 2')
        e('v_and_b32 v12, 3, v0')
        e('v_lshlrev_b32 v12, 3, v12')
        e('v_lshl_add_u32 v10, v10, 7, v12')
        for t in range(4):
            e(f'v_xor_b32 v12, {t}, v11')
            e(f'v_lshl_add_u32 {v(self.TRP+t)}, v12, 5, v10')

    def tr_w1(self, half):
        e = self.e
        e(f's_lshl_b32 {s(S_T)}, {s(S_WAVE)}, 15')
        e(f's_add_u32 {s(S_T)}, {s(S_T)}, {L_STG}')
        for t in range(4):
            e(f'v_add_u32 {v(116+t)}, {s(S_T)}, {v(self.TRP+t)}')
        for t in range(4):
            for ks in range(16):
                e(f'ds_read_b64_tr_b16 {a((t*16+ks)*4+2*half, 2)}, {v(116+t)} offset:{ks*2048}')

    W2V = 128

    def tr_w2(self):
        e = self.e
        e(f's_lshl_b32 {s(S_T)}, {s(S_WAVE)}, 15')
        e(f's_add_u32 {s(S_T)}, {s(S_T)}, {L_STG}')
        for t in range(4):
            e(f'v_add_u32 {v(116+t)}, {s(S_T)}, {v(self.TRP+t)}')
        for kp in range(4):
            for t in range(8):
                for h in range(2):
                    off = (32*kp+16*h)*128 + (t >> 2)*16384
                    e(f'ds_read_b64_tr_b16 {v(self.W2V+(kp*8+t)*4+2*h, 2)}, {v(116+(t&3))} offset:{off}')

    QR = 96

    def early_B(self):
        e = self.e
        HR, HN = 16, 32
        e(f's_getreg_b32 {s(S_T)}, hwreg(HW_REG_XCC_ID, 0, 4)')
        e(f's_or_b32 {s(S_T)}, {s(S_T)}, 0x80')
        e(f'v_mov_b32 v3, {s(S_T)}')
        e(f's_lshl_b32 {s(S_T+1)}, {s(S_X)}, 5')
        e(f's_add_u32 {s(S_T+1)}, {s(S_T+1)}, {s(S_I)}')
        e(f'buffer_store_byte v3, v2, {srd(R_DBG)}, {s(S_T+1)} offen sc0 sc1')
        e(f's_lshl_b32 {s(S_T)}, {s(S_X)}, 6')
        e(f's_lshl1_add_u32 {s(S_T)}, {s(S_I)}, {s(S_T)}')
        e(f's_add_u32 {s(S_T)}, {s(S_T)}, {s(S_WAVE)}')
        e(f's_sub_u32 {s(S_T)}, {s(S_T)}, 2')
        e(f's_lshl_b32 {s(S_T)}, {s(S_T)}, 12')
        e('v_lshlrev_b32 v4, 4, v0')
        for j in range(4):
            e(f'buffer_load_dwordx4 {v(HR+4*j,4)}, v4, {srd(R_H)}, {s(S_T)} offen offset:{1024*j}')
            e(f'buffer_load_dword {v(HN+j)}, v4, {srd(R_H)}, {s(S_T)} offen offset:{1024*j+16}')
        e.wait_lg()
        self.epoch_ready()
        self.stamp(0)
        e(f's_lshl_b32 {s(S_T)}, {s(S_G)}, 4')
        e(f's_lshl1_add_u32 {s(S_T)}, {s(S_R)}, {s(S_T)}')
        e(f's_add_u32 {s(S_T)}, {s(S_T)}, {s(S_WAVE)}')
        e(f's_sub_u32 {s(S_T)}, {s(S_T)}, 2')
        e(f's_lshl_b32 {s(S_T)}, {s(S_T)}, 12')
        e('v_lshlrev_b32 v5, 3, v0')
        for j in range(4):
            e(f'buffer_load_dwordx2 {v(self.QR+4*j,2)}, v5, {srd(R_Q)}, {s(S_T)} offen offset:{1024*j}')
            e(f'buffer_load_dwordx2 {v(self.QR+4*j+2,2)}, v5, {srd(R_Q)}, {s(S_T)} offen offset:{1024*j+512}')
        self.dma_setup(self.VO1, 3584)
        self.dma_setup(self.VO2, 1024)
        e(f's_sub_u32 {s(S_T+6)}, {s(S_WAVE)}, 2')
        e(f's_mul_i32 {s(S_T+8)}, {s(S_T+6)}, 8320')
        e(f's_mul_i32 {s(S_T+9)}, {s(S_T+6)}, 4608')
        e('v_mov_b32 v6, 0')
        e('v_mov_b32 v7, 0')
        e('v_lshlrev_b32 v8, 3, v0')
        e(f'v_add_u32 v8, {s(S_T+9)}, v8')
        e(f'ds_write_b64 v8, v[6:7] offset:{L_UR+4096}')
        e('v_and_b32 v8, 3, v0')
        e('v_lshlrev_b32 v8, 3, v8')
        e(f'v_add_u32 v8, {s(S_T+8)}, v8')
        e(f'ds_write_b64 v8, v[6:7] offset:{L_HC}')
        e(f'ds_write_b64 v8, v[6:7] offset:{L_HC+4160}')
        e(f'v_add_u32 v8, {s(S_T+8)}, v4')
        for j in range(4):
            e(f'ds_write_b128 v8, {v(HR+4*j,4)} offset:{L_HC+32+1024*j}')
            T = 36
            for d in range(4):
                nxt = v(HR+4*j+d+1) if d < 3 else v(HN+j)
                e(f'v_alignbit_b32 {v(T+d)}, {nxt}, {v(HR+4*j+d)}, 16')
            e(f'ds_write_b128 v8, {v(T,4)} offset:{L_HC+4160+32+1024*j}')
            if j == 0:
                e(f'v_lshlrev_b32 v40, 16, {v(HR)}')
                e('s_mov_b64 exec, 1')
                e(f'ds_write_b32 v8, v40 offset:{L_HC+4160+28}')
                e('s_mov_b64 exec, -1')
        e.wait_vm()
        self.issue_w1(0)
        e('v_lshlrev_b32 v6, 7, v0')
        e(f's_lshl1_add_u32 {s(S_T)}, {s(S_I)}, {s(S_T+6)}')
        e(f's_mul_i32 {s(S_T+1)}, {s(S_T)}, 14336')
        e(f's_add_u32 {s(S_T+1)}, {s(S_T+1)}, {256*3584}')
        for j in range(2):
            e(f'buffer_load_dword v95, v6, {srd(R_W1)}, {s(S_T+1)} offen'); e.vm[-1][1] = set()
            e(f's_add_u32 {s(S_T+1)}, {s(S_T+1)}, 8192')
        e(f's_mul_i32 {s(S_T+1)}, {s(S_T)}, 28672')
        for j in range(4):
            e(f'buffer_load_dword v95, v6, {srd(R_W2)}, {s(S_T+1)} offen'); e.vm[-1][1] = set()
            e(f's_add_u32 {s(S_T+1)}, {s(S_T+1)}, 8192')
        e.force_wait(vm=6)
        self.stamp(1)

    def conv_preload(self):
        e = self.e
        e(f's_lshr_b32 {s(S_T)}, {s(S_WAVE)}, 1')
        e(f's_and_b32 {s(S_T+1)}, {s(S_WAVE)}, 1')
        e(f's_lshl_b32 {s(S_T+2)}, {s(S_X)}, 7')
        e(f's_lshl2_add_u32 {s(S_T+2)}, {s(S_I)}, {s(S_T+2)}')
        e(f's_load_dword {s(S_D)}, {s(S_DDP,2)}, {s(S_T+2)}')
        e(f's_mul_i32 {s(S_T+3)}, {s(S_T)}, 8320')
        e(f's_lshl_b32 {s(S_T+4)}, {s(S_T+1)}, 8')
        e(f's_add_u32 {s(S_T+3)}, {s(S_T+3)}, {s(S_T+4)}')
        e('v_and_b32 v3, 15, v0')
        e('v_lshrrev_b32 v4, 4, v0')
        e('v_add_u32 v5, 1, v3')
        e('v_lshrrev_b32 v6, 1, v5')
        e('v_lshlrev_b32 v6, 2, v6')
        e('v_lshl_add_u32 v6, v4, 4, v6')
        e('v_and_b32 v5, 1, v5')
        e(f's_movk_i32 {s(S_T+5)}, 4160')
        e(f'v_mad_u32_u24 v6, v5, {s(S_T+5)}, v6')
        e(f'v_add_u32 v6, {s(S_T+3)}, v6')
        for q in range(4):
            if q:
                e(f'v_add_u32 v6, 1024, v6')
            for a2 in range(2):
                aa = 2*q + a2
                for b in range(4):
                    dwo = a2*128 + b*16
                    r = 128 + (b*8+aa)*4
                    e(f'ds_read2_b32 {v(r,2)}, v6 offset0:{dwo} offset1:{dwo+1}')
                    e(f'ds_read2_b32 {v(r+2,2)}, v6 offset0:{dwo+2} offset1:{dwo+3}')
        e.wait_lg()
        e(f's_lshl_b32 {s(S_T+2)}, {s(S_T)}, 4')
        e(f's_lshr_b32 {s(S_D)}, {s(S_D)}, {s(S_T+2)}')
        e(f's_and_b32 {s(S_D)}, {s(S_D)}, 0xffff')
        e(f's_cmp_lg_u32 {s(S_T+1)}, 0')
        e(f's_cselect_b32 {s(S_D)}, 0, {s(S_D)}')
        e('v_lshl_add_u32 v5, v4, 3, v3')
        e('v_sub_u32 v5, 15, v5')
        e('v_and_b32 v7, 1, v5')
        e('v_lshlrev_b32 v7, 4, v7')
        e(f'v_mov_b32 v8, {s(S_D)}')
        e('v_lshlrev_b32 v7, v7, v8')
        e('v_ashrrev_i32 v5, 1, v5')
        for jj in range(4):
            e(f'v_cmp_eq_u32 vcc, {jj}, v5')
            e(f'v_cndmask_b32 {v(12+jj)}, 0, v7, vcc')
        e(f's_mul_i32 {s(S_T+3)}, {s(S_T)}, 4608')
        e(f's_add_u32 {s(S_T+3)}, {s(S_T+3)}, {s(S_T+4)}')
        e(f's_add_u32 {s(S_T+3)}, {s(S_T+3)}, {L_UR+480}')
        e('v_lshlrev_b32 v5, 5, v3')
        e('v_lshlrev_b32 v8, 4, v4')
        e('v_sub_u32 v8, v8, v5')
        e(f'v_add_u32 v8, {s(S_T+3)}, v8')

    def load_u_A(self):
        e = self.e
        e(f's_lshl_b32 {s(S_T)}, {s(S_X)}, 8')
        e(f's_add_u32 {s(S_T)}, {s(S_T)}, {WS_F1}')
        e('v_lshlrev_b32 v3, 2, v0')
        self.poll(3, s(S_T))
        self.stamp(2)
        e(f's_lshl_b32 {s(S_T)}, {s(S_X)}, 6')
        e(f's_lshl1_add_u32 {s(S_T)}, {s(S_I)}, {s(S_T)}')
        e(f's_add_u32 {s(S_T)}, {s(S_T)}, {s(S_WAVE)}')
        e(f's_lshl_b32 {s(S_T)}, {s(S_T)}, 12')
        e(f's_add_u32 {s(S_T)}, {s(S_T)}, {WS_U}')
        e(f's_mul_i32 {s(S_T+1)}, {s(S_WAVE)}, 4608')
        e(f's_add_u32 m0, {s(S_T+1)}, {L_UR}')
        e('v_lshlrev_b32 v3, 4, v0')
        for j in range(4):
            e(f'buffer_load_dwordx4 v3, {srd(R_WS)}, {s(S_T)} offen offset:{1024*j} sc1 lds')
        e.wait_vm()

    ACC = 16

    def conv_main(self):
        e = self.e
        ACC = self.ACC
        BF = [48, 80] if False else [48, 48]
        def loadB(b, ee):
            e(f'ds_read_b128 {v(48+ee*4,4)}, v8 offset:{(7-ee)*512 + b*64}')
        for ee in range(8):
            loadB(0, ee)
        for b in range(4):
            if b == 0:
                for t in range(8):
                    e(f'v_mfma_f32_16x16x32_bf16 {v(ACC+4*t,4)}, v[12:15], {v(48+4*t,4)}, 0')
            for ee in range(7, -1, -1):
                for aa in range(0, 8-ee):
                    t = aa + ee
                    e(f'v_mfma_f32_16x16x32_bf16 {v(ACC+4*t,4)}, {v(128+(b*8+aa)*4,4)}, {v(48+4*ee,4)}, {v(ACC+4*t,4)}')
                if b < 3:
                    loadB(b+1, ee)

    def conv_fin_B(self):
        e = self.e
        e(f's_lshl_b32 {s(S_T)}, {s(S_WAVE)}, 13')
        e('v_lshlrev_b32 v3, 4, v0')
        e(f'v_add_u32 v3, {s(S_T)}, v3')
        for t in range(8):
            e(f'ds_write_b128 v3, {v(self.ACC+4*t,4)} offset:{t*1024}')

    def conv_fin_A(self):
        e = self.e
        ACC = self.ACC
        L1, Ld = self.lab('cf1'), self.lab('cfd')
        e('v_lshlrev_b32 v3, 4, v0')
        e('v_and_b32 v4, 15, v0')
        e('v_lshrrev_b32 v5, 4, v0')
        e('v_lshl_add_u32 v4, v4, 2, v5')
        e('v_lshlrev_b32 v4, 12, v4')
        e(f's_lshl_b32 {s(S_T)}, {s(S_X)}, 5')
        e(f's_add_u32 {s(S_T)}, {s(S_T)}, {s(S_I)}')
        e(f's_lshr_b32 {s(S_T+1)}, {s(S_T)}, 7')
        e(f's_and_b32 {s(S_T+2)}, {s(S_T)}, 1')
        e(f's_lshl1_add_u32 {s(S_T+1)}, {s(S_T+1)}, {s(S_T+2)}')
        e(f's_lshl_b32 {s(S_T+1)}, {s(S_T+1)}, 10')
        e(f's_bfe_u32 {s(S_T+2)}, {s(S_T)}, 0x60001')
        e(f's_lshl4_add_u32 {s(S_T+1)}, {s(S_T+2)}, {s(S_T+1)}')
        e(f's_add_u32 {s(S_T+1)}, {s(S_T+1)}, {WS_Y}')
        e(f's_cmp_lg_u32 {s(S_WAVE)}, 0')
        e.branch(f's_cbranch_scc1 {L1}')
        st = e.snapshot()
        for vv in range(2):
            if vv == 1:
                e.label(L1)
                e.restore(st)
            for t in range(4*(1-vv), 4*(1-vv)+4):
                e(f'ds_write_b128 v3, {v(ACC+4*t,4)} offset:{vv*8192+t*1024}')
            e.barrier()
            T = 48
            for k, t in enumerate(range(4*vv, 4*vv+4)):
                e(f'ds_read_b128 {v(T+12*k,4)}, v3 offset:{(1-vv)*8192+t*1024}')
                e(f'ds_read_b128 {v(T+12*k+4,4)}, v3 offset:{2*8192+t*1024}')
                e(f'ds_read_b128 {v(T+12*k+8,4)}, v3 offset:{3*8192+t*1024}')
            e(f's_add_u32 {s(S_T+1)}, {s(S_T+1)}, {vv*4*64*4096}')
            for k, t in enumerate(range(4*vv, 4*vv+4)):
                for h in range(2):
                    e(f'v_pk_add_f32 {v(ACC+4*t+2*h,2)}, {v(ACC+4*t+2*h,2)}, {v(T+12*k+2*h,2)}')
                    e(f'v_pk_add_f32 {v(T+12*k+4+2*h,2)}, {v(T+12*k+4+2*h,2)}, {v(T+12*k+8+2*h,2)}')
                for j in range(4):
                    e(f'v_cvt_pk_bf16_f32 {v(T+12*k+j)}, {v(ACC+4*t+j)}, {v(T+12*k+4+j)}')
                e(f'buffer_store_dwordx4 {v(T+12*k,4)}, v4, {srd(R_WS)}, {s(S_T+1)} offen sc1')
                if k < 3:
                    e(f's_add_u32 {s(S_T+1)}, {s(S_T+1)}, {64*4096}')
            if vv == 0:
                e.branch(f's_branch {Ld}')
        e.label(Ld)
        e(f's_lshl1_add_u32 {s(S_T)}, s2, {s(S_WAVE)}')
        e(f's_lshl_b32 {s(S_T)}, {s(S_T)}, 2')
        e(f's_add_u32 {s(S_T)}, {s(S_T)}, {WS_F2}')
        self.publish(s(S_T), always_dev=True)
        self.stamp(4)

    BIAS, C1, C2, RING, WRING = 20, 36, 52, 84, 96
    VL16, VHW, VPS, VFP, VPL = 3, 4, 5, 6, 7
    WLA = 116
    SEL, PF, B2R = 192, 200, 232

    def ffn_setup(self, role):
        e = self.e
        nt = 4 if role == 'A' else 3
        e(f'v_lshlrev_b32 {v(self.VL16)}, 4, v0')
        e(f's_lshl_b32 {s(S_T)}, {s(S_WAVE)}, 2')
        e(f's_cmp_eq_u32 {s(S_WAVE)}, 3')
        e(f's_cselect_b32 {s(S_T)}, 11, {s(S_T)}')
        e(f's_mul_i32 {s(S_T+1)}, {s(S_R)}, 448')
        e(f's_lshl_b32 {s(S_T+2)}, {s(S_T)}, 5')
        e(f's_add_u32 {s(S_T+1)}, {s(S_T+1)}, {s(S_T+2)}')
        e('v_lshrrev_b32 v10, 4, v0')
        e('v_lshlrev_b32 v11, 3, v10')
        for t in range(nt):
            e(f'buffer_load_dwordx2 {v(self.C1+2*t,2)}, v11, {srd(R_B1)}, {s(S_T+1)} offen offset:{32*t}')
        e(f's_lshr_b32 {s(S_T+2)}, {s(S_T)}, 1')
        e(f's_lshl_b32 {s(S_T+2)}, {s(S_T+2)}, 10')
        e(f's_add_u32 {s(S_T+2)}, {s(S_T+2)}, {L_HB}')
        e(f'v_add_u32 {v(self.VHW)}, {s(S_T+2)}, {v(self.VL16)}')
        e('v_and_b32 v12, 15, v0')
        e('v_lshlrev_b32 v12, 13, v12')
        e('v_lshl_add_u32 v12, v10, 4, v12')
        e(f's_lshl_b32 {s(S_T+2)}, {s(S_R)}, 10')
        e(f's_lshl_b32 {s(S_T+3)}, {s(S_WAVE)}, 8')
        e(f's_add_u32 {s(S_T+2)}, {s(S_T+2)}, {s(S_T+3)}')
        e(f'v_add_u32 {v(self.VPS)}, {s(S_T+2)}, v12')
        e(f's_mul_i32 {s(S_T+2)}, {s(S_WAVE)}, 24576')
        e(f's_add_u32 {s(S_T+2)}, {s(S_T+2)}, {L_WL}')
        for t in range(4):
            e(f'v_add_u32 {v(self.WLA+t)}, {s(S_T+2)}, {v(self.TRP+t)}')
        for t in range(nt):
            for h in range(2):
                e(f'v_lshlrev_b32 {v(self.BIAS+4*t+2*h)}, 16, {v(self.C1+2*t+h)}')
                e(f'v_and_b32 {v(self.BIAS+4*t+2*h+1)}, {s(S_MASK)}, {v(self.C1+2*t+h)}')
        if role == 'A':
            e(f'v_min_u32 {v(self.VFP)}, 15, v0')
        else:
            e(f'v_min_u32 {v(self.VFP)}, 31, v0')
        e(f'v_lshlrev_b32 {v(self.VFP)}, 2, {v(self.VFP)}')
        if role == 'B':
            e('v_and_b32 v12, 15, v0')
            e('v_lshlrev_b32 v12, 4, v12')
            e(f'v_lshl_add_u32 {v(self.VPL)}, v10, 10, v12')
            e('v_and_b32 v12, 15, v0')
            e('v_and_b32 v13, 1, v12')
            e('v_lshlrev_b32 v13, 4, v13')
            e('v_mov_b32 v14, 0x3f80')
            e('v_lshlrev_b32 v13, v13, v14')
            e('v_lshrrev_b32 v12, 1, v12')
            for k in range(8):
                e(f'v_cmp_eq_u32 vcc, {k}, v12')
                e('v_cndmask_b32 v14, 0, v13, vcc')
                e(f'v_accvgpr_write_b32 {a(self.SEL+k)}, v14')
            e('v_lshlrev_b32 v8, 3, v0')
            e(f'buffer_load_dwordx2 v[12:13], v8, {srd(R_B2)}, 0 offen')
            e(f'buffer_load_dwordx2 v[14:15], v8, {srd(R_B2)}, 0 offen offset:512')
            for h in range(4):
                e(f'v_lshlrev_b32 v10, 16, {v(12+h)}')
                e(f'v_and_b32 v11, {s(S_MASK)}, {v(12+h)}')
                e(f'v_accvgpr_write_b32 {a(self.B2R+2*h)}, v10')
                e(f'v_accvgpr_write_b32 {a(self.B2R+2*h+1)}, v11')

    def stats(self, X, T):
        e = self.e
        e(f'v_add_f32 {v(T)}, {v(X)}, {v(X+1)}')
        e(f'v_mul_f32 {v(T+1)}, {v(X)}, {v(X)}')
        for j in range(1, 8):
            if j > 1:
                e(f'v_add_f32 {v(T)}, {v(T)}, {v(X+j)}')
            e(f'v_fmac_f32 {v(T+1)}, {v(X+j)}, {v(X+j)}')
        e(f'v_permlane32_swap_b32 {v(T)}, {v(T+1)}')
        e(f'v_add_f32 {v(T)}, {v(T)}, {v(T+1)}')
        for m in ('quad_perm:[1,0,3,2]', 'quad_perm:[2,3,0,1]', 'row_half_mirror', 'row_mirror'):
            e(f'v_add_f32_dpp {v(T)}, {v(T)}, {v(T)} {m} row_mask:0xf bank_mask:0xf')
        e(f'v_add_f32_dpp {v(T)}, {v(T)}, {v(T)} row_bcast:15 row_mask:0xa bank_mask:0xf')
        e(f'v_readlane_b32 {s(S_T+10)}, {v(T)}, 31')
        e(f'v_readlane_b32 {s(S_T+11)}, {v(T)}, 63')
        e(f'v_mov_b32 {v(T+2)}, 0x3b000000')
        e(f'v_mul_f32 {v(T+1)}, {s(S_T+10)}, {v(T+2)}')
        e(f'v_mov_b32 {v(T+3)}, 0x3727c5ac')
        e(f'v_fma_f32 {v(T)}, {s(S_T+11)}, {v(T+2)}, {v(T+3)}')
        e(f'v_fma_f32 {v(T)}, -{v(T+1)}, {v(T+1)}, {v(T)}')
        e(f'v_max_f32 {v(T)}, {v(T)}, {v(T+3)}')
        e(f'v_rsq_f32 {v(T)}, {v(T)}')
        e(f'v_mul_f32 {v(T+1)}, {v(T+1)}, {v(T)}')
        e(f'v_sub_f32 {v(T+1)}, 0, {v(T+1)}')

    def glp(self, X, s_set, s_pass):
        e = self.e
        T, YR, YF, N = X+8, X+12, X+16, X+24
        e(f's_sub_u32 {s(S_T+6)}, {s(S_WAVE)}, 2')
        e(f's_lshl_b32 {s(S_T+7)}, {s(S_T+6)}, 12')
        e(f's_lshl2_add_u32 {s(S_T+7)}, {s(s_set)}, {s(S_T+7)}')
        e(f's_add_u32 {s(S_T+7)}, {s(S_T+7)}, {L_YS}')
        e(f'v_add_u32 v10, {s(S_T+7)}, {v(self.VL16)}')
        e(f'ds_read2st64_b32 {v(YR,2)}, v10 offset0:0 offset1:4')
        e(f'ds_read2st64_b32 {v(YR+2,2)}, v10 offset0:8 offset1:12')
        self.stats(X, T)
        for h in range(4):
            e(f'v_lshlrev_b32 {v(YF+2*h)}, 16, {v(YR+h)}')
            e(f'v_and_b32 {v(YF+2*h+1)}, {s(S_MASK)}, {v(YR+h)}')
        for j in range(8):
            e(f'v_fma_f32 {v(N+j)}, {v(X+j)}, {v(T)}, {v(T+1)}')
        for j in range(8):
            e(f'v_fmac_f32 {v(X+j)}, {v(N+j)}, {v(YF+j)}')
        self.stats(X, T)
        for j in range(8):
            e(f'v_fma_f32 {v(N+j)}, {v(X+j)}, {v(T)}, {v(T+1)}')
        for h in range(4):
            e(f'v_cvt_pk_bf16_f32 {v(YR+h)}, {v(N+2*h)}, {v(N+2*h+1)}')
        e(f's_lshl_b32 {s(S_T+7)}, {s(s_pass)}, 5')
        e(f's_add_u32 {s(S_T+7)}, {s(S_T+7)}, {s(S_G)}')
        e(f's_lshl1_add_u32 {s(S_T+8)}, {s(S_R)}, {s(S_T+6)}')
        e(f's_lshl_b32 {s(S_T+9)}, {s(S_T+7)}, 14')
        e(f's_lshl4_add_u32 {s(S_T+9)}, {s(S_T+8)}, {s(S_T+9)}')
        e(f's_add_u32 {s(S_T+9)}, {s(S_T+9)}, {WS_XN}')
        e('v_lshlrev_b32 v10, 8, v0')
        Ls, Ld = self.lab('xs'), self.lab('xd')
        e(f's_cmp_lg_u32 {s(S_MODE)}, 0')
        e.branch(f's_cbranch_scc1 {Ls}')
        e(f'buffer_store_dwordx4 {v(YR,4)}, v10, {srd(R_WS)}, {s(S_T+9)} offen')
        e.branch(f's_branch {Ld}')
        e.label(Ls)
        e(f'buffer_store_dwordx4 {v(YR,4)}, v10, {srd(R_WS)}, {s(S_T+9)} offen sc1')
        e.label(Ld)
        for j in range(8):
            e(f'v_accvgpr_read_b32 {v(N+j)}, {a(self.B2R+j)}')
        for j in range(8):
            e(f'v_add_f32 {v(X+j)}, {v(X+j)}, {v(N+j)}')
        self.rs_addr(s_set)
        e(f'ds_write_b128 v10, {v(X,4)}')
        e(f'ds_write_b128 v10, {v(X+4,4)} offset:1024')
        e(f's_lshl_b32 {s(S_T+7)}, {s(S_T+7)}, 7')
        e(f's_lshl2_add_u32 {s(S_T+7)}, {s(S_T+8)}, {s(S_T+7)}')
        e(f's_add_u32 {s(S_T+7)}, {s(S_T+7)}, {WS_FX}')
        self.publish(s(S_T+7))

    def rs_addr(self, s_set):
        e = self.e
        e(f's_sub_u32 {s(S_T+12)}, {s(S_WAVE)}, 2')
        e(f's_lshl2_add_u32 {s(S_T+12)}, {s(S_T+12)}, {s(s_set)}')
        e(f's_lshl_b32 {s(S_T+12)}, {s(S_T+12)}, 11')
        e(f's_add_u32 {s(S_T+12)}, {s(S_T+12)}, {L_RS}')
        e(f'v_add_u32 v10, {s(S_T+12)}, {v(self.VL16)}')

    def start_B(self):
        e = self.e
        e(f's_mov_b32 {s(S_T)}, {WS_F2}')
        self.poll(self.VL16, s(S_T), nreg=8, tmp=self.C2)
        self.stamp(6)
        e(f's_sub_u32 {s(S_T+6)}, {s(S_WAVE)}, 2')
        e(f's_lshl_b32 {s(S_T)}, {s(S_G)}, 4')
        e(f's_lshl1_add_u32 {s(S_T)}, {s(S_R)}, {s(S_T)}')
        e(f's_add_u32 {s(S_T)}, {s(S_T)}, {s(S_T+6)}')
        e(f's_lshl_b32 {s(S_T)}, {s(S_T)}, 12')
        e(f's_add_u32 {s(S_T)}, {s(S_T)}, {WS_Y}')
        e(f's_lshl_b32 {s(S_T+1)}, {s(S_T+6)}, 12')
        e(f's_add_u32 m0, {s(S_T+1)}, {L_YS}')
        for j in range(4):
            e(f'buffer_load_dwordx4 {v(self.VL16)}, {srd(R_WS)}, {s(S_T)} offen offset:{1024*j} sc1 lds')
        Lk = self.lab('ep')
        e(f's_add_u32 {s(S_T+1)}, s2, {s(S_T+6)}')
        e(f's_cmp_lg_u32 {s(S_T+1)}, 0')
        e.branch(f's_cbranch_scc1 {Lk}')
        e(f'buffer_store_dword v1, v2, {srd(R_WS)}, 0 offen sc1')
        e.label(Lk)
        e.force_wait(vm=0)
        X = self.C2
        for j in range(4):
            for h in range(4):
                e(f'v_lshlrev_b32 {v(X+2*h)}, 16, {v(self.QR+4*j+h)}')
                e(f'v_and_b32 {v(X+2*h+1)}, {s(S_MASK)}, {v(self.QR+4*j+h)}')
            e(f's_mov_b32 {s(S_L+4)}, {j}')
            self.glp(X, S_L+4, S_L+4)
        self.stamp(7)

    def exchange(self):
        e = self.e
        pp, sj, tp = S_L+5, S_L+4, S_L+6
        X = self.C2
        e(f's_and_b32 {s(sj)}, {s(pp)}, 3')
        e(f's_lshl_b32 {s(S_T)}, {s(pp)}, 5')
        e(f's_add_u32 {s(S_T)}, {s(S_T)}, {s(S_G)}')
        e(f's_lshl_b32 {s(S_T)}, {s(S_T)}, 7')
        e(f's_add_u32 {s(S_T)}, {s(S_T)}, {WS_FP}')
        self.rs_addr(sj)
        e(f'ds_read_b128 {v(X,4)}, v10')
        e(f'ds_read_b128 {v(X+4,4)}, v10 offset:1024')
        self.poll(self.VFP, s(S_T))
        e(f's_sub_u32 {s(S_T+6)}, {s(S_WAVE)}, 2')
        e(f's_lshl1_add_u32 {s(S_T+8)}, {s(S_R)}, {s(S_T+6)}')
        e(f's_lshl_b32 {s(S_T)}, {s(sj)}, 5')
        e(f's_add_u32 {s(S_T)}, {s(S_T)}, {s(S_G)}')
        e(f's_lshl4_add_u32 {s(S_T)}, {s(S_T)}, {s(S_T+8)}')
        e(f's_lshl_b32 {s(S_T)}, {s(S_T)}, 13')
        e(f's_add_u32 {s(S_T)}, {s(S_T)}, {WS_PT}')
        e(f's_add_u32 {s(S_T+1)}, {s(S_T)}, 4096')
        for pg in range(2):
            for blk in range(4):
                e(f'buffer_load_dwordx4 {a(self.PF+(pg*4+blk)*4,4)}, {v(self.VPL)}, {srd(R_WS)}, {s(S_T+pg)} offen offset:{blk*256} sc1')
        for pg in range(2):
            for blk in range(4):
                tau, hb = blk >> 1, blk & 1
                e(f'v_mfma_f32_16x16x32_bf16 {v(X+4*tau,4)}, {a(self.SEL+4*hb,4)}, {a(self.PF+(pg*4+blk)*4,4)}, {v(X+4*tau,4)}')
        Lo, Ld = self.lab('exo'), self.lab('exd')
        e(f's_cmp_ge_u32 {s(pp)}, 4')
        e.branch(f's_cbranch_scc1 {Lo}')
        st = e.snapshot()
        e(f's_add_u32 {s(tp)}, {s(pp)}, 4')
        self.glp(X, sj, tp)
        e.wait_lg()
        e.branch(f's_branch {Ld}')
        e.label(Lo)
        e.restore(st)
        for h in range(4):
            e(f'v_cvt_pk_bf16_f32 {v(X+8+h)}, {v(X+2*h)}, {v(X+2*h+1)}')
        e(f's_lshl4_add_u32 {s(S_T)}, {s(S_G)}, {s(S_T+8)}')
        e(f's_lshl2_add_u32 {s(S_T)}, {s(S_T)}, {s(sj)}')
        e(f's_lshl_b32 {s(S_T)}, {s(S_T)}, 10')
        e('v_lshlrev_b32 v10, 3, v0')
        e(f'buffer_store_dwordx2 {v(X+8,2)}, v10, {srd(R_OUT)}, {s(S_T)} offen')
        e(f'buffer_store_dwordx2 {v(X+10,2)}, v10, {srd(R_OUT)}, {s(S_T)} offen offset:512')
        e.label(Ld)

    def ffn_loop(self, role):
        e = self.e
        nt = 4 if role == 'A' else 3
        C1, C2, RING, WR = self.C1, self.C2, self.RING, self.WRING
        Lp = self.lab('pass')
        e(f's_mov_b32 {s(S_P)}, 0')
        e.force_wait(vm=0, lg=0)
        e.label(Lp)
        e(f's_and_b32 {s(S_L+7)}, {s(S_P)}, 1')
        e(f's_lshl_b32 {s(S_L+7)}, {s(S_L+7)}, 14')
        e(f's_lshl_b32 {s(S_L+8)}, {s(S_P)}, 5')
        e(f's_add_u32 {s(S_L+8)}, {s(S_L+8)}, {s(S_G)}')
        if role == 'A':
            e(f's_lshl_b32 {s(S_T)}, {s(S_L+8)}, 7')
            e(f's_add_u32 {s(S_T)}, {s(S_T)}, {WS_FX}')
            self.poll(self.VFP, s(S_T))
            e(f's_lshl_b32 {s(S_T)}, {s(S_L+8)}, 14')
            e(f's_lshl_b32 {s(S_T+1)}, {s(S_WAVE)}, 13')
            e(f's_add_u32 {s(S_T)}, {s(S_T)}, {s(S_T+1)}')
            e(f's_add_u32 {s(S_T)}, {s(S_T)}, {WS_XN}')
            e(f's_add_u32 {s(S_T+1)}, {s(S_T+1)}, {s(S_L+7)}')
            for q in range(2):
                e(f's_add_u32 m0, {s(S_T+1)}, {L_XB+4096*q}')
                for j in range(4):
                    e(f'buffer_load_dwordx4 {v(self.VL16)}, {srd(R_WS)}, {s(S_T)} offen offset:{1024*j} sc1 lds')
                if q == 0:
                    e(f's_add_u32 {s(S_T)}, {s(S_T)}, 4096')
            e.wait_vm()
        e(f'v_add_u32 v10, {s(S_L+7)}, {v(self.VL16)}')
        e.barrier()
        def ldx(ks):
            e(f'ds_read_b128 {v(RING+4*(ks%3),4)}, v10 offset:{L_XB+ks*1024}')
        ldx(0)
        ldx(1)
        for ks in range(16):
            if ks + 2 < 16:
                ldx(ks+2)
            for t in range(nt):
                c = v(self.BIAS+4*t, 4) if ks == 0 else v(C1+4*t, 4)
                e(f'v_mfma_f32_16x16x32_bf16 {v(C1+4*t,4)}, {a((t*16+ks)*4,4)}, {v(RING+4*(ks%3),4)}, {c}')
        for t in range(nt):
            for j in range(4):
                e(f'v_mul_f32_e64 {v(C1+4*t+j)}, {v(C1+4*t+j)}, |{v(C1+4*t+j)}|')
        for t in range(nt):
            for h in range(2):
                e(f'v_cvt_pk_bf16_f32 {v(C1+2*t+h)}, {v(C1+4*t+2*h)}, {v(C1+4*t+2*h+1)}')
        for k in range(2*nt):
            e(f'v_pk_max_i16 {v(C1+k)}, {v(C1+k)}, 0')
        if role == 'A':
            e(f'ds_write_b128 {v(self.VHW)}, {v(C1,4)}')
            e(f'ds_write_b128 {v(self.VHW)}, {v(C1+4,4)} offset:1024')
        else:
            L3, Ld = self.lab('hw3'), self.lab('hwd')
            e(f's_cmp_eq_u32 {s(S_WAVE)}, 3')
            e.branch(f's_cbranch_scc1 {L3}')
            e(f'ds_write_b128 {v(self.VHW)}, {v(C1,4)}')
            e(f'ds_write_b64 {v(self.VHW)}, {v(C1+4,2)} offset:1024')
            e.branch(f's_branch {Ld}')
            e.label(L3)
            e(f'ds_write_b64 {v(self.VHW)}, {v(C1,2)} offset:8')
            e(f'ds_write_b128 {v(self.VHW)}, {v(C1+2,4)} offset:1024')
            e.label(Ld)
            e.force_wait(lg=0)
        e.barrier()
        def ldh(k):
            e(f'ds_read_b128 {v(RING+4*(k%3),4)}, {v(self.VL16)} offset:{L_HB+k*1024}')
        wl = [(k, t) for k in range(4, 7) for t in range(8)]
        def ldw(i):
            k, t = wl[i]
            for h in range(2):
                off = (32*(k-4)+16*h)*128 + (t >> 2)*12288
                e(f'ds_read_b64_tr_b16 {v(WR+4*(i%4)+2*h,2)}, {v(self.WLA+(t&3))} offset:{off}')
        ldh(0)
        ldh(1)
        for k in range(7):
            if k + 2 < 7:
                ldh(k+2)
            if k == 3:
                ldw(0); ldw(1); ldw(2)
            for t in range(8):
                c = '0' if k == 0 else v(C2+4*t, 4)
                if k < 4:
                    w = v(self.W2V+(k*8+t)*4, 4)
                else:
                    i = (k-4)*8+t
                    if i + 3 < len(wl):
                        ldw(i+3)
                    w = v(WR+4*(i % 4), 4)
                e(f'v_mfma_f32_16x16x32_bf16 {v(C2+4*t,4)}, {w}, {v(RING+4*(k%3),4)}, {c}')
        e(f's_and_b32 {s(S_T)}, {s(S_L+8)}, 127')
        e(f's_lshl_b32 {s(S_T)}, {s(S_T)}, 17')
        e(f's_add_u32 {s(S_T)}, {s(S_T)}, {WS_PT}')
        for sg in range(4):
            b0, b1 = C2+4*sg, C2+4*(sg+4)
            e(f'v_cvt_pk_bf16_f32 {v(b0)}, {v(b0)}, {v(b0+1)}')
            e(f'v_cvt_pk_bf16_f32 {v(b0+1)}, {v(b0+2)}, {v(b0+3)}')
            e(f'v_cvt_pk_bf16_f32 {v(b0+2)}, {v(b1)}, {v(b1+1)}')
            e(f'v_cvt_pk_bf16_f32 {v(b0+3)}, {v(b1+2)}, {v(b1+3)}')
            e(f'buffer_store_dwordx4 {v(b0,4)}, {v(self.VPS)}, {srd(R_WS)}, {s(S_T)} offen offset:{sg*64}')
        e(f's_lshl_b32 {s(S_T)}, {s(S_L+8)}, 7')
        e(f's_lshl2_add_u32 {s(S_T+1)}, {s(S_R)}, {s(S_WAVE)}')
        e(f's_lshl2_add_u32 {s(S_T)}, {s(S_T+1)}, {s(S_T)}')
        e(f's_add_u32 {s(S_T)}, {s(S_T)}, {WS_FP}')
        self.publish(s(S_T))
        if role == 'B':
            Lk = self.lab('noex')
            e(f's_cmp_eq_u32 {s(S_P)}, 0')
            e.branch(f's_cbranch_scc1 {Lk}')
            e(f's_sub_u32 {s(S_L+5)}, {s(S_P)}, 1')
            self.exchange()
            e.label(Lk)
        if self.stamps:
            e(f's_add_u32 {s(S_T0)}, {s(S_T0)}, 4')
            self.stamp(7)
        e(f's_add_u32 {s(S_P)}, {s(S_P)}, 1')
        e(f's_cmp_lt_u32 {s(S_P)}, 8')
        e.force_wait(lg=0)
        e.branch(f's_cbranch_scc1 {Lp}')
        if role == 'B':
            e(f's_mov_b32 {s(S_L+5)}, 7')
            self.exchange()

    def read_mode(self):
        e = self.e
        e(f'v_mov_b32 v3, {L_MODE}')
        e('ds_read_b32 v4, v3')
        e(f'v_readfirstlane_b32 {s(S_MODE)}, v4')

    def build(self):
        e = self.e
        self.prologue()
        e(f's_cmp_ge_u32 {s(S_WAVE)}, 2')
        e.branch('s_cbranch_scc1 L_roleB', settle=True)
        st = e.snapshot()
        for role in 'AB':
            if role == 'B':
                e.label('L_roleB')
                e.restore(st)
                self.early_B()
            else:
                self.phase0_A()
            self.tr_patterns()
            e.barrier()
            if role == 'B':
                self.read_mode()
            self.tr_w1(0)
            e.barrier()
            if role == 'B':
                self.issue_w1(1)
            self.conv_preload()
            if role == 'A':
                self.load_u_A()
            e.barrier()
            self.stamp(3)
            self.conv_main()
            e.barrier()
            if role == 'A':
                self.conv_fin_A()
            else:
                self.conv_fin_B()
                e.barrier()
                e.force_wait(vm=0)
            if self.stop == 'conv':
                e.force_wait(vm=0)
                e.branch('s_branch L_end')
                continue
            e.barrier()
            self.tr_w1(1)
            e.barrier()
            if role == 'B':
                e(f's_sub_u32 {s(S_T+6)}, {s(S_WAVE)}, 2')
                self.issue_w2(0, S_T+6)
                e.force_wait(vm=0)
            else:
                self.dma_setup(self.VO2, 1024)
            e.barrier()
            self.tr_w2()
            e.barrier()
            self.stamp(5)
            if role == 'A':
                self.issue_w2(1, S_WAVE)
            self.ffn_setup(role)
            if role == 'B':
                self.start_B()
            self.ffn_loop(role)
            e.force_wait(vm=0)
            e.branch('s_branch L_end')
        e.label('L_end')
        e('s_endpgm')
        return self.wrap(e.text())

    def wrap(self, body):
        ref = open(f'cdna_kernels/{NAME}.s.ref').read().splitlines()
        hdr = [l for l in ref if l.startswith(';') and '@launch' not in l]
        out = '\n'.join(hdr) + '\n'
        out += f'; @launch grid=(256,1,1) block=(256,1,1) lds={LDS_BYTES}\n'
        out += f'''.amdgcn_target "amdgcn-amd-amdhsa--gfx950"
.text
.globl {NAME}_kernel
.p2align 8
.type {NAME}_kernel,@function
{NAME}_kernel:
'''
        out += body
        out += f'''.section .rodata,"a"
.p2align 6
.amdhsa_kernel {NAME}_kernel
  .amdhsa_next_free_vgpr 512
  .amdhsa_next_free_sgpr 102
  .amdhsa_accum_offset 256
  .amdhsa_group_segment_fixed_size 0
  .amdhsa_kernarg_size 112
  .amdhsa_user_sgpr_count 2
  .amdhsa_user_sgpr_kernarg_segment_ptr 1
  .amdhsa_system_sgpr_workgroup_id_x 1
.end_amdhsa_kernel
'''
        return out


if __name__ == '__main__':
    import argparse
    ap = argparse.ArgumentParser()
    ap.add_argument('-o', default=f'cdna_kernels/{NAME}.s')
    ap.add_argument('--slow', action='store_true')
    ap.add_argument('--stop', default=None)
    ap.add_argument('--stamps', action='store_true')
    args = ap.parse_args()
    g = Gen(force_slow=args.slow, stop=args.stop, stamps=args.stamps)
    open(args.o, 'w').write(g.build())
    print('instruction counts', g.e.count)
```
